```python
import torch

def _softmax(x, axis=-1):
    return torch.softmax(x, dim=axis)
def _gelu(x):
    return torch.nn.functional.gelu(x, approximate="tanh")
def _silu(x):
    return torch.nn.functional.silu(x)
def _sigmoid(x):
    return torch.sigmoid(x)
def _layernorm(x, axis=-1, eps=1e-5):
    m = x.mean(dim=axis, keepdim=True)
    v = x.var(dim=axis, keepdim=True, unbiased=False)
    return (x - m) / torch.sqrt(v + eps)
def _scatter_add(tgt, idx, src, axis=0):
    return tgt.clone().index_add_(axis, idx, src)
def _segment_sum(src, seg, n):
    out = torch.zeros((n,) + src.shape[1:], dtype=src.dtype)
    return out.index_add_(0, seg, src)
def _pad(x, pw):
    flat = tuple(v for pair in reversed(pw) for v in pair)
    return torch.nn.functional.pad(x, flat)

kernel_name = 'recurrent_scan__spectral_fnet__geglu_ffn__prompt'

def setup_inputs():

    _w = (lambda a: (lambda t: t.to(torch.bfloat16) if t.is_floating_point() else t)(torch.as_tensor(a)))
    def _A_setup():
        B, S, D = 1, 2048, 448
        ns = torch.arange(S)[:, None] * torch.arange(S)[None, :]
        nd = torch.arange(D)[:, None] * torch.arange(D)[None, :]
        Ws_re = torch.cos(-2.0 * torch.pi * ns / S).to(float)
        Ws_im = torch.sin(-2.0 * torch.pi * ns / S).to(float)
        Wd_re = torch.cos(-2.0 * torch.pi * nd / D).to(float)
        Wd_im = torch.sin(-2.0 * torch.pi * nd / D).to(float)
        return {
            "x": _w((lambda *s: torch.randn(*s, dtype=torch.bfloat16) * 0.05)(B, S, D)),
            "dft_seq_re": _w(Ws_re),
            "dft_seq_im": _w(Ws_im),
            "dft_hid_re": _w(Wd_re),
            "dft_hid_im": _w(Wd_im),
        }
    _A_in = _A_setup()

    def _B_setup():
        B, S, D, F = 1, 2048, 448, 1792
        return {
            "x": _w((lambda *s: torch.randn(*s, dtype=torch.bfloat16) * 0.05)(B, S, D)),
            "w_gate": _w((lambda *s: torch.randn(*s, dtype=torch.bfloat16) * 0.05)(D, F)),
            "w_up": _w((lambda *s: torch.randn(*s, dtype=torch.bfloat16) * 0.05)(D, F)),
            "w_down": _w((lambda *s: torch.randn(*s, dtype=torch.bfloat16) * 0.05)(F, D)),
        }
    _B_in = _B_setup()

    return {
        "A_x": _A_in["x"],
        "A_dft_seq_re": _A_in["dft_seq_re"],
        "A_dft_seq_im": _A_in["dft_seq_im"],
        "A_dft_hid_re": _A_in["dft_hid_re"],
        "A_dft_hid_im": _A_in["dft_hid_im"],
        "B_x": _B_in["x"],
        "B_w_gate": _B_in["w_gate"],
        "B_w_up": _B_in["w_up"],
        "B_w_down": _B_in["w_down"],
    }

def reference(A_x, A_dft_seq_re, A_dft_seq_im, A_dft_hid_re, A_dft_hid_im, B_x, B_w_gate, B_w_up, B_w_down):
    def _A_ref(x, dft_seq_re, dft_seq_im, dft_hid_re, dft_hid_im):
        a = torch.einsum("bsd,ed->bse", x, dft_hid_re)
        b = torch.einsum("bsd,ed->bse", x, dft_hid_im)
        y = torch.einsum("ts,bse->bte", dft_seq_re, a) - torch.einsum("ts,bse->bte", dft_seq_im, b)
        return y

    def _B_ref(x, w_gate, w_up, w_down):
        return (_gelu(x @ w_gate) * (x @ w_up)) @ w_down

    x = A_x
    xn = _layernorm(x, axis=-1)
    s = _A_ref(xn, A_dft_seq_re, A_dft_seq_im, A_dft_hid_re, A_dft_hid_im)
    g = _silu(_B_ref(xn, B_w_gate, B_w_up, B_w_down))
    return x + s * g
```

```python
class Asm:
    def __init__(self):
        self.lines = []
    def __call__(self, s):
        for l in s.split("\n"):
            self.lines.append("    " + l.strip() if l.strip() and not l.strip().endswith(":") else l.strip())
    def label(self, n): self.lines.append(n + ":")
    def text(self): return "\n".join(self.lines) + "\n"

def kernel_head(name):
    return f""".globl {name}
.p2align 8
.type {name},@function
{name}:
"""
def kernel_desc(name, vgpr, sgpr, accum):
    return f""".p2align 6
.amdhsa_kernel {name}
  .amdhsa_next_free_vgpr {vgpr}
  .amdhsa_next_free_sgpr {sgpr}
  .amdhsa_accum_offset {accum}
  .amdhsa_group_segment_fixed_size 0
  .amdhsa_kernarg_size 96
  .amdhsa_user_sgpr_count 2
  .amdhsa_user_sgpr_kernarg_segment_ptr 1
  .amdhsa_system_sgpr_workgroup_id_x 1
.end_amdhsa_kernel
"""
def srd(a, d, base, nbytes):
    a(f"s_mov_b32 s{d}, s{base}")
    a(f"s_and_b32 s{d+1}, s{base+1}, 0xffff")
    a(f"s_mov_b32 s{d+2}, {nbytes}")
    a(f"s_mov_b32 s{d+3}, 0x20000")

STAMP_OFF = 0x8000000
def stamp_store(a, srd_ws, kidx, nwaves, sregs, vtmp, wave_s):
    a(f"s_mul_i32 s100, s2, {nwaves}")
    a(f"s_add_u32 s100, s100, s{wave_s}")
    a(f"s_lshl_b32 s100, s100, 7")
    a(f"s_add_u32 s100, s100, {STAMP_OFF + kidx*0x100000}")
    a(f"s_mov_b64 exec, 1")
    a(f"v_mov_b32 v{vtmp}, 0")
    for i, s in enumerate(sregs):
        a(f"v_mov_b32 v{vtmp+2}, s{s}")
        a(f"v_mov_b32 v{vtmp+3}, s{s+1}")
        a(f"buffer_store_dwordx2 v[{vtmp+2}:{vtmp+3}], v{vtmp}, s[{srd_ws}:{srd_ws+3}], s100 offen offset:{i*8}")
        a("s_nop 1")
    a("s_waitcnt vmcnt(0)")
```

```python
import sys, struct
from asmlib import *

def f2u(x): return struct.unpack("<I", struct.pack("<f", x))[0]
def hx(x): return "0x%08x" % f2u(x)

KNAME = "recurrent_scan__spectral_fnet__geglu_ffn__prompt"
H_BYTES = 64*112*1024
Z_OFF = 0x700000
Z_BYTES = 32*32*224*8
XRS = 57344
LOG2E = 1.4426950408889634
K0 = -2*0.7978845608028654*LOG2E
K1 = K0*0.044715

class Opt:
    stamps = False
    mapping = "A"
opt = Opt()

def vr(b, n): return f"v[{b}:{b+n-1}]"
def sr(b, n): return f"s[{b}:{b+n-1}]"
def mfma(a, d, A, B, C=None):
    c = vr(d,16) if C is None else C
    a(f"v_mfma_f32_32x32x16_bf16 {vr(d,16)}, {vr(A,4)}, {vr(B,4)}, {c}")

S_X, S_SR, S_SI, S_HR, S_HI, S_BX, S_WG, S_WU = 16,18,20,22,24,26,28,30
S_WD, S_OUT, S_DBG, S_WS = 32,34,36,38
SRD_X, SRD_W0, SRD_W1, SRD_WS, SRD_A, SRD_B, SRD_C = 40,44,48,52,56,76,80
S_W, S_RB, S_CB, S_RH, S_CQ = 60,61,62,63,64
S_XOFF, S_WOFF, S_M0X, S_M0W, S_B, S_DA, S_DB, S_SLOT, S_DSLOT, S_MASK, S_T0 = 65,66,67,68,69,70,71,72,73,74,75
S_ST = 84

def stamp(a, i):
    if opt.stamps:
        a(f"s_memrealtime s[{S_ST+2*i}:{S_ST+2*i+1}]")

def common_head(a, nwg, done):
    a(f"s_cmp_ge_u32 s2, {nwg}")
    a(f"s_cbranch_scc1 {done}")
    a("s_load_dwordx16 s[16:31], s[0:1], 0")
    a("s_load_dwordx8 s[32:39], s[0:1], 64")
    stamp(a, 0)
    a("v_lshrrev_b32 v2, 6, v0")
    a("v_and_b32 v1, 63, v0")
    a(f"v_readfirstlane_b32 s{S_W}, v2")

XBASE, WBASE, STBASE = 0, 49152, 147456
ACC = 64
def acc(t, m): return ACC + (t*2+m)*16
def fA(s, t): return 32 + s*16 + t*4
def fB(s, m): return 32 + s*16 + 8 + m*4
V_A, V_B = 10, 14
V_X0, V_X1, V_W0, V_W1 = 18, 19, 20, 21
V_RS1, V_RS2, V_CS = 22, 24, 26
V_T = 28
V_F = 128

def p1_dma(a, RS):
    a(f"s_mov_b32 m0, s{S_M0X}")
    a(f"s_add_u32 s{S_T0}, s{S_M0W}, 16384")
    a(f"buffer_load_dwordx4 v{V_X0}, {sr(SRD_X,4)}, s{S_XOFF} offen lds")
    a(f"buffer_load_dwordx4 v{V_X1}, {sr(SRD_X,4)}, s{S_XOFF} offen offset:1024 lds")
    a(f"s_mov_b32 m0, s{S_M0W}")
    a(f"s_add_u32 s{S_XOFF}, s{S_XOFF}, 128")
    a(f"buffer_load_dwordx4 v{V_W0}, {sr(SRD_W0,4)}, s{S_WOFF} offen lds")
    a(f"buffer_load_dwordx4 v{V_W1}, {sr(SRD_W0,4)}, s{S_WOFF} offen offset:1024 lds")
    a(f"s_mov_b32 m0, s{S_T0}")
    a(f"s_add_u32 s{S_DSLOT}, s{S_DSLOT}, 1")
    a(f"buffer_load_dwordx4 v{V_W0}, {sr(SRD_W1,4)}, s{S_WOFF} offen lds")
    a(f"buffer_load_dwordx4 v{V_W1}, {sr(SRD_W1,4)}, s{S_WOFF} offen offset:1024 lds")
    a(f"s_add_u32 s{S_WOFF}, s{S_WOFF}, {64*RS}")
    a(f"s_cmp_eq_u32 s{S_DSLOT}, 3")
    a(f"s_cselect_b32 s{S_T0}, -2, 1")
    a(f"s_cselect_b32 s{S_DSLOT}, 0, s{S_DSLOT}")
    a(f"s_lshl_b32 s{S_T0}, s{S_T0}, 14")
    a(f"s_add_u32 s{S_M0X}, s{S_M0X}, s{S_T0}")
    a(f"s_add_u32 s{S_M0W}, s{S_M0W}, s{S_T0}")
    a(f"s_add_u32 s{S_M0W}, s{S_M0W}, s{S_T0}")

def p1_reads(pos, s):
    r = []
    for t in range(2):
        r.append(f"ds_read_b128 {vr(fA(s,t),4)}, v{V_A+pos} offset:{t*4096}")
    for m in range(2):
        for h in range(2):
            r.append(f"ds_read_b64_tr_b16 {vr(fB(s,m)+2*h,2)}, v{V_B+pos} offset:{m*16384+h*1024}")
    return r

def p1_stats(pos, s):
    ops = []
    if pos < 2:
        t = pos
        for d in range(4):
            src = fA(s,t)+d; t0 = V_T + (d&1)*2; t1 = t0+1
            ops += [f"v_lshlrev_b32 v{t0}, 16, v{src}", f"v_and_b32 v{t1}, s{S_MASK}, v{src}",
                    f"v_add_f32 v{V_RS1+t}, v{V_RS1+t}, v{t0}", f"v_fmac_f32 v{V_RS2+t}, v{t0}, v{t0}",
                    f"v_add_f32 v{V_RS1+t}, v{V_RS1+t}, v{t1}", f"v_fmac_f32 v{V_RS2+t}, v{t1}, v{t1}"]
    else:
        for m in range(2):
            for d in range(4):
                src = fB(s,m)+d; t0 = V_T + (d&1)*2; t1 = t0+1
                ops += [f"v_lshlrev_b32 v{t0}, 16, v{src}", f"v_and_b32 v{t1}, s{S_MASK}, v{src}",
                        f"v_add_f32 v{V_CS+m}, v{V_CS+m}, v{t0}", f"v_add_f32 v{V_CS+m}, v{V_CS+m}, v{t1}"]
    return ops

def p1_compute(a, pos, s, dft):
    st = p1_stats(pos, s)
    n = len(st)//4
    i = 0
    for t in range(2):
        for m in range(2):
            if dft: mfma(a, acc(t,m), fA(s,t), fB(s,m))
            else:   mfma(a, acc(t,m), fB(s,m), fA(s,t))
            for o in st[i*n:(i+1)*n]: a(o)
            i += 1

def p1_body(a, dft, L, done):
    RS = 896 if dft else 3584
    wbytes = 448*RS
    a(f"v_lshrrev_b32 v3, 4, v1")
    a(f"v_lshrrev_b32 v4, 3, v1")
    a(f"v_and_b32 v5, 7, v1")
    a(f"v_xor_b32 v5, v5, v3")
    a(f"v_lshlrev_b32 v5, 4, v5")
    a(f"v_mul_u32_u24 v4, {XRS}, v4")
    a(f"v_add_u32 v{V_X0}, v4, v5")
    a(f"v_xor_b32 v{V_X1}, 64, v{V_X0}")
    a(f"v_add_u32 v{V_X1}, {8*XRS-1024}, v{V_X1}")
    a(f"v_and_b32 v5, 15, v1")
    a(f"v_lshlrev_b32 v6, 2, v3")
    a(f"v_xor_b32 v6, v5, v6")
    a(f"v_lshlrev_b32 v6, 4, v6")
    a(f"v_mul_u32_u24 v7, {RS}, v3")
    a(f"v_add_u32 v{V_W0}, v6, v7")
    a(f"v_add_u32 v{V_W1}, {4*RS-1024}, v{V_W0}")
    a(f"s_lshr_b32 s{S_RH}, s{S_W}, 2")
    a(f"s_and_b32 s{S_CQ}, s{S_W}, 3")
    a(f"s_mul_i32 s{S_XOFF}, s{S_RB}, 3584")
    a(f"s_lshr_b32 s{S_T0}, s{S_W}, 1")
    a(f"s_mul_i32 s{S_T0}, s{S_T0}, 896")
    a(f"s_add_u32 s{S_XOFF}, s{S_XOFF}, s{S_T0}")
    a(f"s_and_b32 s{S_T0}, s{S_W}, 1")
    a(f"s_mul_i32 s{S_T0}, s{S_T0}, {16*XRS}")
    a(f"s_add_u32 s{S_XOFF}, s{S_XOFF}, s{S_T0}")
    a(f"s_mul_i32 s{S_WOFF}, s{S_W}, {8*RS}")
    a(f"s_lshl_b32 s{S_T0}, s{S_CB}, 8")
    a(f"s_add_u32 s{S_WOFF}, s{S_WOFF}, s{S_T0}")
    if dft: a(f"s_sub_u32 s{S_WOFF}, s{S_WOFF}, {14*256-448}")
    a(f"s_lshl_b32 s{S_M0X}, s{S_W}, 11")
    a(f"s_add_u32 s{S_M0W}, s{S_M0X}, {WBASE}")
    a(f"s_mov_b32 s{S_DSLOT}, 0")
    a("s_waitcnt lgkmcnt(0)")
    srd(a, SRD_X, S_X, 2048*896)
    srd(a, SRD_W0, S_HR if dft else S_WG, wbytes)
    srd(a, SRD_W1, S_HI if dft else S_WU, wbytes)
    for b in range(3): p1_dma(a, RS)
    srd(a, SRD_WS, S_WS, 0x10000000)
    if dft:
        srd(a, SRD_A, S_SR, 2048*4096)
        srd(a, SRD_B, S_SI, 2048*4096)
    a(f"s_lshl_b32 s{S_T0}, s{S_RH}, 1")
    a(f"s_xor_b32 s{S_T0}, s{S_T0}, s{S_CQ}")
    a(f"v_and_b32 v4, 31, v1")
    a(f"v_lshrrev_b32 v6, 5, v1")
    a(f"v_bfe_u32 v7, v1, 1, 3")
    a(f"v_xor_b32 v7, v7, v6")
    a(f"s_lshl_b32 s{S_DA}, s{S_T0}, 1")
    a(f"v_xor_b32 v7, s{S_DA}, v7")
    a(f"v_lshlrev_b32 v7, 4, v7")
    a(f"v_lshl_add_u32 v7, v4, 7, v7")
    a(f"s_lshl_b32 s{S_DA}, s{S_RH}, 13")
    a(f"v_add_u32 v{V_A}, s{S_DA}, v7")
    for p in range(1,4): a(f"v_xor_b32 v{V_A+p}, {p*32}, v{V_A}")
    a(f"v_lshrrev_b32 v7, 2, v5")
    a(f"v_lshl_add_u32 v8, v6, 3, v7")
    a(f"v_lshlrev_b32 v8, 8, v8")
    a(f"v_xor_b32 v7, s{S_CQ}, v7")
    a(f"v_lshl_add_u32 v8, v7, 6, v8")
    a(f"v_and_b32 v7, 1, v3")
    a(f"v_lshl_add_u32 v8, v7, 5, v8")
    a(f"v_and_b32 v7, 3, v1")
    a(f"v_lshl_add_u32 v8, v7, 3, v8")
    a(f"s_lshl_b32 s{S_DA}, s{S_T0}, 12")
    a(f"s_add_u32 s{S_DA}, s{S_DA}, {WBASE}")
    a(f"v_add_u32 v{V_B}, s{S_DA}, v8")
    for p in range(1,4): a(f"v_xor_b32 v{V_B+p}, {p*4096}, v{V_B}")
    a(f"s_mov_b32 s{S_MASK}, 0xffff0000")
    for r in range(V_RS1, V_RS1+6): a(f"v_mov_b32 v{r}, 0")
    for r in range(ACC, ACC+64): a(f"v_mov_b32 v{r}, 0")
    a(f"s_mov_b32 s{S_B}, 0")
    a(f"s_mov_b32 s{S_SLOT}, 0")
    a("s_waitcnt vmcnt(12)")
    a("s_barrier")
    stamp(a, 1)
    for r in p1_reads(0, 0): a(r)
    a.label(f"{L}_loop")
    for pos in range(3):
        for r in p1_reads(pos+1, (pos+1)&1): a(r)
        a("s_waitcnt lgkmcnt(6)")
        p1_compute(a, pos, pos&1, dft)
    a(f"s_cmp_eq_u32 s{S_B}, 6")
    a(f"s_cbranch_scc1 {L}_tail")
    a(f"s_add_u32 s{S_SLOT}, s{S_SLOT}, 1")
    a(f"s_cmp_eq_u32 s{S_SLOT}, 3")
    a(f"s_cselect_b32 s{S_DA}, -2, 1")
    a(f"s_cselect_b32 s{S_SLOT}, 0, s{S_SLOT}")
    a(f"s_lshl_b32 s{S_DA}, s{S_DA}, 14")
    a(f"s_lshl_b32 s{S_DB}, s{S_DA}, 1")
    for p in range(4):
        a(f"v_add_u32 v{V_A+p}, s{S_DA}, v{V_A+p}")
        a(f"v_add_u32 v{V_B+p}, s{S_DB}, v{V_B+p}")
    a(f"s_cmp_eq_u32 s{S_B}, 5")
    a(f"s_cbranch_scc1 {L}_w0")
    a("s_waitcnt vmcnt(6) lgkmcnt(0)")
    a(f"s_branch {L}_w1")
    a.label(f"{L}_w0")
    a(f"s_waitcnt vmcnt({8 if dft else 0}) lgkmcnt(0)")
    a.label(f"{L}_w1")
    a("s_barrier")
    for r in p1_reads(0, 0): a(r)
    a(f"s_cmp_ge_u32 s{S_B}, 4")
    a(f"s_cbranch_scc1 {L}_nodma")
    p1_dma(a, RS)
    if dft:
        a(f"s_branch {L}_dmadone")
        a.label(f"{L}_nodma")
        a(f"s_cmp_eq_u32 s{S_B}, 4")
        a(f"s_cbranch_scc0 {L}_dmadone")
        a(f"v_lshlrev_b32 v2, 18, v4")
        a(f"v_lshl_add_u32 v2, v6, 3, v2")
        for mi, s_ in enumerate((SRD_A, SRD_B)):
            for q in range(4):
                a(f"buffer_load_dwordx2 {vr(V_F+mi*8+q*2,2)}, v2, {sr(s_,4)}, 0 offen offset:{q*16}")
        a.label(f"{L}_dmadone")
    else:
        a.label(f"{L}_nodma")
    p1_compute(a, 3, 1, dft)
    a(f"s_add_u32 s{S_B}, s{S_B}, 1")
    a(f"s_branch {L}_loop")
    a.label(f"{L}_tail")
    a("s_waitcnt lgkmcnt(0)")
    p1_compute(a, 3, 1, dft)
    stamp(a, 2)
    a("s_nop 1")
    a(f"v_permlane32_swap_b32 v{V_RS1}, v{V_RS1+1}")
    a(f"v_permlane32_swap_b32 v{V_RS2}, v{V_RS2+1}")
    a(f"v_permlane32_swap_b32 v{V_CS}, v{V_CS+1}")
    a("s_nop 1")
    a(f"v_add_f32 v28, v{V_RS1}, v{V_RS1+1}")
    a(f"v_add_f32 v29, v{V_RS2}, v{V_RS2+1}")
    a(f"v_add_f32 v30, v{V_CS}, v{V_CS+1}")
    a(f"s_lshl_b32 s{S_DA}, s{S_RH}, 11")
    a(f"s_lshl_b32 s{S_DB}, s{S_CQ}, 3")
    a(f"s_add_u32 s{S_T0}, s{S_DA}, s{S_DB}")
    a(f"s_add_u32 s{S_T0}, s{S_T0}, {STBASE}")
    a(f"v_lshl_add_u32 v2, v1, 5, s{S_T0}")
    a(f"ds_write_b64 v2, v[28:29]")
    a(f"s_lshl_b32 s{S_DB}, s{S_CQ}, 9")
    a(f"s_add_u32 s{S_DB}, s{S_DB}, {STBASE+4096}")
    a(f"s_lshl_b32 s{S_T0}, s{S_RH}, 2")
    a(f"s_add_u32 s{S_T0}, s{S_T0}, s{S_DB}")
    a(f"v_lshl_add_u32 v3, v1, 3, s{S_T0}")
    a(f"ds_write_b32 v3, v30")
    a(f"s_add_u32 s{S_DA}, s{S_DA}, {STBASE}")
    a(f"v_lshl_add_u32 v2, v4, 5, s{S_DA}")
    a(f"v_lshl_add_u32 v3, v4, 3, s{S_DB}")
    a(f"v_cmp_gt_u32 vcc, 32, v1")
    a("s_waitcnt lgkmcnt(0)")
    a("s_barrier")
    a(f"ds_read_b128 v[32:35], v2")
    a(f"ds_read_b128 v[36:39], v2 offset:16")
    a(f"ds_read_b128 v[40:43], v2 offset:1024")
    a(f"ds_read_b128 v[44:47], v2 offset:1040")
    a(f"ds_read_b64 v[48:49], v3")
    a(f"ds_read_b64 v[50:51], v3 offset:256")
    a(f"s_mov_b32 s{S_DA}, {hx(-1.0/448)}")
    a(f"s_mov_b32 s{S_DB}, {hx(1.0/448)}")
    MF, CF = 52, 8
    for r in (MF+2, MF+3, MF+6, MF+7, CF+2, CF+3, CF+6, CF+7): a(f"v_mov_b32 v{r}, 0")
    a("s_waitcnt lgkmcnt(0)")
    V_K = 16
    for t in range(2):
        b = 32+8*t
        a(f"v_pk_add_f32 {vr(b,2)}, {vr(b,2)}, {vr(b+2,2)}")
        a(f"v_pk_add_f32 {vr(b+4,2)}, {vr(b+4,2)}, {vr(b+6,2)}")
        a(f"v_pk_add_f32 {vr(b,2)}, {vr(b,2)}, {vr(b+4,2)}")
        a(f"v_mul_f32 v{b}, s{S_DA}, v{b}")
        a(f"v_mul_f32 v{b+1}, s{S_DB}, v{b+1}")
        a(f"v_fma_f32 v{b+1}, -v{b}, v{b}, v{b+1}")
        a(f"v_max_f32 v{b+1}, 0, v{b+1}")
        a(f"v_add_f32 v{V_K+6*t+4}, {hx(1e-5)}, v{b+1}")
        a(f"v_rsq_f32 v{V_K+6*t+1}, v{V_K+6*t+4}")
        a(f"v_cndmask_b32 v{b}, 0, v{b}, vcc")
        a(f"v_cvt_pk_bf16_f32 v{MF+4*t}, v{b}, v{b}")
        a(f"v_lshlrev_b32 v{b+2}, 16, v{MF+4*t}")
        a(f"v_sub_f32 v{b+2}, v{b}, v{b+2}")
        a(f"v_cvt_pk_bf16_f32 v{MF+4*t+1}, v{b+2}, 0")
    for m in range(2):
        b = 48+2*m
        a(f"v_add_f32 v{b}, v{b}, v{b+1}")
        a(f"v_cvt_pk_bf16_f32 v{CF+4*m+1}, v{b}, 0")
        a(f"v_lshlrev_b32 v{b+1}, 16, v{CF+4*m+1}")
        a(f"v_sub_f32 v{b+1}, v{b}, v{b+1}")
        a(f"v_cvt_pk_bf16_f32 v{CF+4*m}, v{b}, v{b+1}")
    a("s_nop 1")
    for t in range(2):
        for m in range(2):
            if dft: mfma(a, acc(t,m), MF+4*t, CF+4*m)
            else:   mfma(a, acc(t,m), CF+4*m, MF+4*t)
    if not dft:
        a(f"s_mov_b32 s{S_DA}, {hx(K0)}")
        a(f"s_mov_b32 s{S_DB}, {hx(K1)}")
        for t in range(2):
            k = V_K+6*t
            a(f"v_mul_f32 v{k}, s{S_DA}, v{k+1}")
            a(f"v_mul_f32 v{k+2}, v{k+1}, v{k+1}")
            a(f"v_mul_f32 v{k+2}, v{k+2}, v{k+1}")
            a(f"v_mul_f32 v{k+2}, s{S_DB}, v{k+2}")
        a(f"v_lshlrev_b32 v2, 4, v1")
        a(f"s_lshl_b32 s{S_T0}, s{S_RB}, 1")
        a(f"s_add_u32 s{S_T0}, s{S_T0}, s{S_RH}")
        a(f"s_mul_i32 s{S_XOFF}, s{S_T0}, {2*112*1024}")
        a(f"s_lshl_b32 s{S_T0}, s{S_CB}, 2")
        a(f"s_add_u32 s{S_T0}, s{S_T0}, s{S_CQ}")
        a(f"s_lshl_b32 s{S_T0}, s{S_T0}, 11")
        a(f"s_add_u32 s{S_XOFF}, s{S_XOFF}, s{S_T0}")
        a(f"s_add_u32 s{S_WOFF}, s{S_XOFF}, {112*1024}")
        a("s_nop 7")
        for t in range(2):
            k = V_K+6*t
            for fh in range(2):
                g0 = acc(t,0)+8*fh; u0 = acc(t,1)+8*fh
                T = 32 + ((t*2+fh)&1)*8
                O = 48 + ((t*2+fh)&3)*4
                P = range(4)
                for p in P: a(f"v_pk_mul_f32 {vr(T+2*p,2)}, {vr(g0+2*p,2)}, {vr(g0+2*p,2)}")
                for p in P: a(f"v_pk_fma_f32 {vr(T+2*p,2)}, {vr(T+2*p,2)}, {vr(k+2,2)}, {vr(k,2)} op_sel_hi:[1,0,0]")
                for p in P: a(f"v_pk_mul_f32 {vr(T+2*p,2)}, {vr(T+2*p,2)}, {vr(g0+2*p,2)}")
                for p in range(8): a(f"v_exp_f32 v{T+p}, v{T+p}")
                for p in P: a(f"v_pk_mul_f32 {vr(u0+2*p,2)}, {vr(g0+2*p,2)}, {vr(u0+2*p,2)}")
                for p in P: a(f"v_pk_fma_f32 {vr(T+2*p,2)}, {vr(T+2*p,2)}, {vr(k+4,2)}, {vr(k+4,2)} op_sel_hi:[1,0,0]")
                for p in range(8): a(f"v_rcp_f32 v{T+p}, v{T+p}")
                a("s_nop 0")
                for p in P: a(f"v_pk_mul_f32 {vr(u0+2*p,2)}, {vr(u0+2*p,2)}, {vr(T+2*p,2)}")
                for p in P: a(f"v_cvt_pk_bf16_f32 v{O+p}, v{u0+2*p}, v{u0+2*p+1}")
                a(f"buffer_store_dwordx4 {vr(O,4)}, v2, {sr(SRD_WS,4)}, s{S_XOFF if t==0 else S_WOFF} offen offset:{fh*1024}")
    else:
        a(f"s_lshl_b32 s{S_T0}, s{S_W}, 8")
        a(f"s_add_u32 s{S_T0}, s{S_T0}, {STBASE+8192}")
        a(f"v_lshl_add_u32 v2, v4, 2, s{S_T0}")
        a(f"v_lshl_add_u32 v3, v6, 4, s{S_T0}")
        a(f"ds_write_b32 v2, v{V_K+1}")
        a(f"ds_write_b32 v2, v{V_K+7} offset:128")
        RR = 152
        for t in range(2):
            for q in range(4):
                a(f"ds_read_b128 {vr(RR+16*t+4*q,4)}, v3 offset:{t*128+q*32}")
        a("s_waitcnt vmcnt(0)")
        a(f"s_mov_b32 s{S_DA}, 0x80008000")
        for r in range(8): a(f"v_xor_b32 v{V_F+16+r}, s{S_DA}, v{V_F+8+r}")
        a(f"s_sub_u32 s{S_T0}, s{S_CB}, 14")
        a(f"s_lshl_b32 s{S_T0}, s{S_T0}, 2")
        a(f"s_add_u32 s{S_T0}, s{S_T0}, s{S_CQ}")
        a(f"s_cmp_ge_u32 s{S_T0}, 7")
        a(f"s_cbranch_scc1 {L}_end")
        a(f"s_lshl_b32 s{S_XOFF}, s{S_T0}, 8")
        a(f"s_lshl_b32 s{S_T0}, s{S_RB}, 1")
        a(f"s_add_u32 s{S_T0}, s{S_T0}, s{S_RH}")
        a(f"s_mul_i32 s{S_T0}, s{S_T0}, {32*1792}")
        a(f"s_add_u32 s{S_XOFF}, s{S_XOFF}, s{S_T0}")
        a(f"s_add_u32 s{S_XOFF}, s{S_XOFF}, {Z_OFF}")
        a(f"v_mul_u32_u24 v2, {4*1792}, v6")
        a(f"v_lshl_add_u32 v2, v4, 3, v2")
        a("s_waitcnt lgkmcnt(0)")
        a("s_nop 3")
        for t in range(2):
            for m in range(2):
                b = acc(t,m)
                for p in range(8): a(f"v_pk_mul_f32 {vr(b+2*p,2)}, {vr(b+2*p,2)}, {vr(RR+16*t+2*p,2)}")
                for p in range(8): a(f"v_cvt_pk_bf16_f32 v{32+16*t+8*m+p}, v{b+2*p}, v{b+2*p+1}")
        a("s_nop 1")
        Fr, Fi, nFi = V_F, V_F+8, V_F+16
        for t in range(2):
            za, zb = 32+16*t, 32+16*t+8
            mfma(a, acc(t,0), Fr, za, "0");   mfma(a, acc(t,1), Fi, za, "0")
            mfma(a, acc(t,0), Fr+4, za+4);    mfma(a, acc(t,1), Fi+4, za+4)
            mfma(a, acc(t,0), nFi, zb);       mfma(a, acc(t,1), Fr, zb)
            mfma(a, acc(t,0), nFi+4, zb+4);   mfma(a, acc(t,1), Fr+4, zb+4)
        a("s_nop 15")
        for r in range(16):
            O = 32 + 2*r
            a(f"v_cvt_pk_bf16_f32 v{O}, v{acc(0,0)+r}, v{acc(1,0)+r}")
            a(f"v_cvt_pk_bf16_f32 v{O+1}, v{acc(0,1)+r}, v{acc(1,1)+r}")
            a(f"buffer_store_dwordx2 {vr(O,2)}, v2, {sr(SRD_WS,4)}, s{S_XOFF} offen")
            if r < 15:
                a(f"s_add_u32 s{S_XOFF}, s{S_XOFF}, {1792 if (r&3)!=3 else 5*1792}")
        a.label(f"{L}_end")
    stamp(a, 3)
    if opt.stamps:
        a("s_waitcnt vmcnt(0)")
        stamp(a, 4)
        a("s_waitcnt lgkmcnt(0)")
        stamp_store(a, SRD_WS, 0, 8, [S_ST+2*i for i in range(5)], 4, S_W)
    a("s_endpgm")

def k1(a, name):
    a.lines.append(kernel_head(name))
    common_head(a, 256, "k1_done")
    if opt.mapping == "A":
        a(f"s_and_b32 s{S_RB}, s2, 1")
        a(f"s_lshl_b32 s{S_RB}, s{S_RB}, 3")
        a(f"s_bfe_u32 s{S_T0}, s2, 0x30003")
        a(f"s_add_u32 s{S_RB}, s{S_RB}, s{S_T0}")
        a(f"s_bfe_u32 s{S_CB}, s2, 0x20001")
        a(f"s_lshl_b32 s{S_CB}, s{S_CB}, 2")
        a(f"s_lshr_b32 s{S_T0}, s2, 6")
        a(f"s_add_u32 s{S_CB}, s{S_CB}, s{S_T0}")
    else:
        a(f"s_and_b32 s{S_RB}, s2, 15")
        a(f"s_lshr_b32 s{S_CB}, s2, 4")
    a(f"s_cmp_ge_u32 s{S_CB}, 14")
    a("s_cbranch_scc1 k1_dft")
    p1_body(a, False, "k1f", "k1_done")
    a.label("k1_dft")
    p1_body(a, True, "k1d", "k1_done")
    a.label("k1_done")
    a("s_endpgm")

S_K, S_CT, S_KQ, S_CH = 61, 62, 63, 64
P2B = 128
P2ACC = 64
P2Y = 96
P2AA = 240-0
def k2(a, name):
    a.lines.append(kernel_head(name))
    common_head(a, 224, "k2_done")
    a(f"s_lshr_b32 s{S_T0}, s2, 3")
    a(f"s_mul_i32 s{S_K}, s{S_T0}, 37")
    a(f"s_lshr_b32 s{S_K}, s{S_K}, 8")
    a(f"s_mul_i32 s{S_CT}, s{S_K}, 7")
    a(f"s_sub_u32 s{S_CT}, s{S_T0}, s{S_CT}")
    a(f"s_and_b32 s{S_T0}, s2, 7")
    a(f"s_lshl_b32 s{S_T0}, s{S_T0}, 2")
    a(f"s_add_u32 s{S_K}, s{S_K}, s{S_T0}")
    a(f"s_lshr_b32 s{S_KQ}, s{S_W}, 1")
    a(f"s_and_b32 s{S_CH}, s{S_W}, 1")
    a("v_lshrrev_b32 v2, 2, v1")
    a("v_mul_u32_u24 v2, 896, v2")
    a("v_and_b32 v3, 3, v1")
    a("v_lshl_add_u32 v2, v3, 4, v2")
    S_C0 = 65; S_WDO = 66; S_HO = 67; S_C = 68; S_M = 69; S_O = 70; S_C32 = 71; S_S0 = 72; S_ZO = 73
    a(f"s_and_b32 s{S_T0}, s{S_K}, 3")
    a(f"s_lshl_b32 s{S_T0}, s{S_T0}, 1")
    a(f"s_add_u32 s{S_C0}, s{S_T0}, s{S_CT}")
    a(f"s_cmp_ge_u32 s{S_C0}, 7")
    a(f"s_cselect_b32 s{S_T0}, 7, 0")
    a(f"s_sub_u32 s{S_C0}, s{S_C0}, s{S_T0}")
    a(f"s_lshl_b32 s{S_C32}, s{S_CT}, 1")
    a(f"s_add_u32 s{S_C32}, s{S_C32}, s{S_CH}")
    a(f"s_mul_i32 s{S_WDO}, s{S_KQ}, {448*896}")
    a(f"s_lshl_b32 s{S_T0}, s{S_C32}, 6")
    a(f"s_add_u32 s{S_WDO}, s{S_WDO}, s{S_T0}")
    a("s_waitcnt lgkmcnt(0)")
    srd(a, SRD_W0, S_WD, 1792*896)
    srd(a, SRD_WS, S_WS, 0x10000000)
    a(f"s_mul_i32 s{S_M}, s{S_W}, 20480")
    a(f"s_mov_b32 s{S_C}, s{S_C0}")
    def wd_chunk(slot):
        a(f"s_mul_i32 s{S_O}, s{S_C}, {64*896}")
        a(f"s_add_u32 s{S_T0}, s{S_M}, {slot*4096}")
        a(f"s_mov_b32 m0, s{S_T0}")
        a(f"s_add_u32 s{S_O}, s{S_O}, s{S_WDO}")
        for st in range(4):
            a(f"buffer_load_dwordx4 v2, {sr(SRD_W0,4)}, s{S_O} offen offset:{st*1024} lds")
            if st < 3: a(f"s_add_u32 s{S_O}, s{S_O}, {16*896-1024}")
        a(f"s_add_u32 s{S_C}, s{S_C}, 1")
        a(f"s_cmp_eq_u32 s{S_C}, 7")
        a(f"s_cselect_b32 s{S_C}, 0, s{S_C}")
    for r in range(5): wd_chunk(r)
    a("v_and_b32 v4, 31, v1")
    a("v_lshrrev_b32 v6, 5, v1")
    a("v_bfe_u32 v5, v1, 2, 2")
    a("v_lshl_add_u32 v5, v6, 2, v5")
    a("v_lshlrev_b32 v5, 6, v5")
    a("v_bfe_u32 v7, v1, 4, 1")
    a("v_lshl_add_u32 v5, v7, 5, v5")
    a("v_lshl_add_u32 v5, v3, 3, v5")
    a(f"v_add_u32 v5, s{S_M}, v5")
    def wd_read(r, slot):
        for st in range(4):
            for h in range(2):
                a(f"ds_read_b64_tr_b16 {vr(P2B+(r*4+st)*4+2*h,2)}, v5 offset:{slot*4096+st*1024+h*512}")
    a("s_waitcnt vmcnt(12)")
    wd_read(0,0); wd_read(1,1)
    a("s_waitcnt lgkmcnt(0)")
    wd_chunk(0); wd_chunk(1)
    a("s_waitcnt vmcnt(8)")
    wd_read(2,2); wd_read(3,3);
    a("s_waitcnt lgkmcnt(0)")
    wd_read(4,4)
    a("s_waitcnt vmcnt(0)")
    wd_read(5,0)
    a("s_waitcnt lgkmcnt(0)")
    wd_read(6,1)
    a("v_lshlrev_b32 v2, 4, v1")
    a(f"s_lshl_b32 s{S_T0}, s{S_CH}, 5")
    a(f"s_add_u32 s{S_T0}, s{S_T0}, s{S_K}")
    a(f"s_mul_i32 s{S_HO}, s{S_T0}, {112*1024}")
    a(f"s_mul_i32 s{S_T0}, s{S_KQ}, {28*1024}")
    a(f"s_add_u32 s{S_HO}, s{S_HO}, s{S_T0}")
    a(f"s_lshl_b32 s{S_M}, s{S_W}, 12")
    a(f"s_mov_b32 s{S_C}, s{S_C0}")
    def h_chunk(slot):
        a(f"s_lshl_b32 s{S_O}, s{S_C}, 12")
        a(f"s_add_u32 s{S_T0}, s{S_M}, {slot*32768}")
        a(f"s_mov_b32 m0, s{S_T0}")
        a(f"s_add_u32 s{S_O}, s{S_O}, s{S_HO}")
        for st in range(4):
            a(f"buffer_load_dwordx4 v2, {sr(SRD_WS,4)}, s{S_O} offen offset:{st*1024} lds")
        a(f"s_add_u32 s{S_C}, s{S_C}, 1")
        a(f"s_cmp_eq_u32 s{S_C}, 7")
        a(f"s_cselect_b32 s{S_C}, 0, s{S_C}")
    a("s_waitcnt lgkmcnt(0)")
    a("s_barrier")
    stamp(a, 1)
    for r in range(4): h_chunk(r)
    a(f"s_lshl_b32 s{S_T0}, s{S_KQ}, 13")
    a(f"s_and_b32 s{S_O}, s{S_KQ}, 1")
    a(f"s_lshl_b32 s{S_O}, s{S_O}, 12")
    a(f"s_add_u32 s{S_T0}, s{S_T0}, s{S_O}")
    a(f"v_add_u32 v8, s{S_T0}, v2")
    a(f"v_xor_b32 v9, 0x1000, v8")
    a(f"v_add_u32 v10, 0x10000, v8")
    a(f"v_add_u32 v11, 0x10000, v9")
    a(f"v_mul_u32_u24 v20, {XRS}, v4")
    a(f"v_lshl_add_u32 v20, v6, 3, v20")
    a(f"s_cmp_ge_u32 s{S_KQ}, 2")
    a("s_cbranch_scc1 k2_nf0")
    srd(a, SRD_A, S_SR, 2048*4096)
    srd(a, SRD_B, S_SI, 2048*4096)
    srd(a, SRD_X, S_X, 2048*896)
    a(f"s_lshl_b32 s{S_S0}, s{S_KQ}, 5")
    a(f"s_add_u32 s{S_S0}, s{S_S0}, s{S_K}")
    a(f"s_lshl_b32 s{S_O}, s{S_S0}, 12")
    a("v_lshlrev_b32 v7, 18, v4")
    a("v_lshl_add_u32 v7, v6, 4, v7")
    for p in range(4):
        a(f"buffer_load_dwordx4 {vr(96+4*p,4)}, v7, {sr(SRD_A,4)}, s{S_O} offen offset:{p*32}")
        a(f"buffer_load_dwordx4 {vr(112+4*p,4)}, v7, {sr(SRD_B,4)}, s{S_O} offen offset:{p*32}")
    a(f"s_mul_i32 s{S_S0}, s{S_S0}, 896")
    a(f"s_lshl_b32 s{S_T0}, s{S_C32}, 6")
    a(f"s_add_u32 s{S_S0}, s{S_S0}, s{S_T0}")
    for q in range(4):
        a(f"buffer_load_dwordx2 {vr(12+2*q,2)}, v20, {sr(SRD_X,4)}, s{S_S0} offen offset:{q*16}")
    a.label("k2_nf0")
    for r in range(P2ACC, P2ACC+32): a(f"v_mov_b32 v{r}, 0")
    def vm_wait(n, extra_fin):
        if extra_fin == 0:
            a(f"s_waitcnt vmcnt({n}) lgkmcnt(0)"); return
        lab = f"k2_w{vm_wait.n}"; vm_wait.n += 1
        a(f"s_waitcnt vmcnt({n+extra_fin}) lgkmcnt(0)")
        a(f"s_cmp_lt_u32 s{S_KQ}, 2")
        a(f"s_cbranch_scc1 {lab}")
        a(f"s_waitcnt vmcnt({n})")
        a.label(lab)
    vm_wait.n = 0
    def h_reads(r, half, s):
        slot = r % 4
        for st in range(2):
            for tl in range(2):
                a(f"ds_read_b128 {vr(32+s*16+(st*2+tl)*4,4)}, v{8+tl+(2 if slot>=2 else 0)} offset:{(slot&1)*32768+(half*2+st)*1024}")
    def h_mfma(r, half, s):
        for st in range(2):
            for tl in range(2):
                mfma(a, P2ACC+16*tl, P2B+(r*4+half*2+st)*4, 32+s*16+(st*2+tl)*4)
    vm_wait(12, 12)
    a("s_barrier")
    h_reads(0,0,0)
    ZR = P2B
    AAF = P2B+32
    for r in range(7):
        h_reads(r,1,1)
        a("s_waitcnt lgkmcnt(4)")
        h_mfma(r,0,0)
        if r == 6: break
        if r == 0: vm_wait(8, 12)
        elif r == 1: vm_wait(8, 12)
        elif r == 2: vm_wait(8, 12)
        elif r == 3: vm_wait(8, 16)
        elif r == 4: vm_wait(4, 16)
        elif r == 5: vm_wait(0, 16)
        a("s_barrier")
        h_reads(r+1,0,0)
        if r < 3: h_chunk(r % 4)
        h_mfma(r,1,1)
        if r == 2:
            a(f"s_cmp_ge_u32 s{S_KQ}, 2")
            a("s_cbranch_scc1 k2_nf1")
            a(f"s_add_u32 s{SRD_C}, s{S_WS}, {Z_OFF}")
            a(f"s_addc_u32 s{SRD_C+1}, s{S_WS+1}, 0")
            a(f"s_and_b32 s{SRD_C+1}, s{SRD_C+1}, 0xffff")
            a(f"s_mov_b32 s{SRD_C+2}, {Z_BYTES}")
            a(f"s_mov_b32 s{SRD_C+3}, 0x20000")
            a(f"s_cmp_ge_u32 s{S_C32}, 7")
            a("s_cbranch_scc1 k2_zdir")
            a(f"s_lshl_b32 s{S_T0}, s{S_C32}, 5")
            a(f"s_sub_u32 s{S_T0}, 224, s{S_T0}")
            a(f"v_sub_u32 v21, s{S_T0}, v4")
            a(f"s_sub_u32 s{S_ZO}, 32, s{S_K}")
            a(f"s_and_b32 s{S_ZO}, s{S_ZO}, 31")
            a(f"s_mov_b32 s{S_MASK}, 0")
            a("s_branch k2_zc")
            a.label("k2_zdir")
            a(f"s_lshl_b32 s{S_T0}, s{S_C32}, 5")
            a(f"s_sub_u32 s{S_T0}, s{S_T0}, 224")
            a(f"v_add_u32 v21, s{S_T0}, v4")
            a(f"s_mov_b32 s{S_ZO}, s{S_K}")
            a(f"s_mov_b32 s{S_MASK}, 0x80008000")
            a.label("k2_zc")
            a(f"s_movk_i32 s{S_T0}, 224")
            a(f"v_cmp_eq_u32 vcc, s{S_T0}, v21")
            a(f"v_lshlrev_b32 v21, 3, v21")
            a(f"v_mul_u32_u24 v22, {4*XRS}, v6")
            a(f"v_add_u32 v21, v21, v22")
            a(f"v_mov_b32 v22, 0x40000000")
            a(f"v_cndmask_b32 v21, v21, v22, vcc")
            a(f"s_mul_i32 s{S_ZO}, s{S_ZO}, 1792")
            for p in range(4):
                for i in range(4):
                    a(f"buffer_load_dwordx2 {vr(ZR+p*8+i*2,2)}, v21, {sr(SRD_C,4)}, s{S_ZO} offen")
                    if not (p==3 and i==3):
                        a(f"s_add_u32 s{S_ZO}, s{S_ZO}, {XRS if i<3 else 5*XRS}")
            a.label("k2_nf1")
        if r == 4:
            a(f"s_cmp_ge_u32 s{S_KQ}, 2")
            a("s_cbranch_scc1 k2_nf2")
            for p in range(4):
                for i in range(4):
                    a(f"v_mov_b32 v{AAF+p*8+i*2}, v{96+4*p+i}")
                    a(f"v_xor_b32 v{AAF+p*8+i*2+1}, s{S_MASK}, v{112+4*p+i}")
            a.label("k2_nf2")
    a("s_waitcnt lgkmcnt(0)")
    h_mfma(6,1,1)
    stamp(a, 2)
    RED = 98304
    a(f"s_and_b32 s{S_O}, s{S_KQ}, 1")
    a(f"s_lshl_b32 s{S_T0}, s{S_O}, 1")
    a(f"s_add_u32 s{S_T0}, s{S_T0}, s{S_CH}")
    a(f"s_mul_i32 s{S_C}, s{S_T0}, 12288")
    a(f"s_xor_b32 s{S_T0}, s{S_T0}, 2")
    a(f"s_mul_i32 s{S_M}, s{S_T0}, 12288")
    a(f"s_add_u32 s{S_C}, s{S_C}, {RED}")
    a(f"s_add_u32 s{S_M}, s{S_M}, {RED}")
    a(f"s_cmp_lt_u32 s{S_KQ}, 2")
    a("s_cbranch_scc1 k2_fin")
    a(f"s_sub_u32 s{S_T0}, s{S_KQ}, 1")
    a(f"s_lshl_b32 s{S_T0}, s{S_T0}, 12")
    a(f"s_add_u32 s{S_C}, s{S_C}, s{S_T0}")
    a(f"s_add_u32 s{S_M}, s{S_M}, s{S_T0}")
    a(f"v_add_u32 v8, s{S_C}, v2")
    a(f"v_add_u32 v9, s{S_M}, v2")
    a("s_nop 7")
    for q in range(4): a(f"ds_write_b128 v8, {vr(P2ACC+4*q,4)} offset:{q*1024}")
    for q in range(4): a(f"ds_write_b128 v9, {vr(P2ACC+16+4*q,4)} offset:{q*1024}")
    a("s_waitcnt lgkmcnt(0)")
    a("s_barrier")
    a("s_branch k2_end")
    a.label("k2_fin")
    a(f"v_add_u32 v8, s{S_C}, v2")
    a(f"v_add_u32 v9, s{S_M}, v2")
    a("s_nop 9")
    for q in range(4): a(f"ds_write_b128 v9, {vr(P2ACC+16+4*q,4)} offset:{q*1024}")
    a("s_waitcnt vmcnt(0)")
    for s in range(8):
        mfma(a, P2Y, ZR+4*s, AAF+4*s, "0" if s==0 else None)
    srd(a, SRD_W1, S_OUT, 2048*896)
    a(f"s_mov_b32 s{S_DA}, {hx(-LOG2E)}")
    a(f"s_mov_b32 s{S_MASK}, 0xffff0000")
    a("s_waitcnt lgkmcnt(0)")
    a("s_barrier")
    R = 192
    for s in range(3):
        for q in range(4): a(f"ds_read_b128 {vr(R+16*s+4*q,4)}, v8 offset:{s*4096+q*1024}")
    for d in range(8):
        a(f"v_lshlrev_b32 v{32+2*d}, 16, v{12+d}")
        a(f"v_and_b32 v{33+2*d}, s{S_MASK}, v{12+d}")
    F = P2ACC
    for s in range(3):
        a(f"s_waitcnt lgkmcnt({8-4*s})")
        for p in range(8): a(f"v_pk_add_f32 {vr(F+2*p,2)}, {vr(F+2*p,2)}, {vr(R+16*s+2*p,2)}")
    T = 48
    for r in range(16): a(f"v_mul_f32 v{T+r}, s{S_DA}, v{F+r}")
    for r in range(16): a(f"v_exp_f32 v{T+r}, v{T+r}")
    for p in range(8): a(f"v_pk_mul_f32 {vr(F+2*p,2)}, {vr(F+2*p,2)}, {vr(P2Y+2*p,2)}")
    for r in range(16): a(f"v_add_f32 v{T+r}, 1.0, v{T+r}")
    for r in range(16): a(f"v_rcp_f32 v{T+r}, v{T+r}")
    a("s_nop 0")
    for p in range(8): a(f"v_pk_fma_f32 {vr(F+2*p,2)}, {vr(F+2*p,2)}, {vr(T+2*p,2)}, {vr(32+2*p,2)}")
    for p in range(8): a(f"v_cvt_pk_bf16_f32 v{12+p}, v{F+2*p}, v{F+2*p+1}")
    for q in range(4):
        a(f"buffer_store_dwordx2 {vr(12+2*q,2)}, v20, {sr(SRD_W1,4)}, s{S_S0} offen offset:{q*16}")
    a.label("k2_end")
    stamp(a, 3)
    if opt.stamps:
        a("s_waitcnt vmcnt(0)")
        stamp(a, 4)
        a("s_waitcnt lgkmcnt(0)")
        stamp_store(a, SRD_WS, 1, 8, [S_ST+2*i for i in range(5)], 4, S_W)
    a.label("k2_done")
    a("s_endpgm")

def main():
    out = sys.argv[1]
    for o in sys.argv[2:]:
        k, v = o.split("=")
        setattr(opt, k, {"0":False,"1":True}.get(v, v))
    n1 = KNAME + "_kernel"; n2 = "fnet_p2_kernel"
    hdr = f"""; FNet(FFT-factored) + GEGLU FFN fused block, generated by gen.py
; @launch kernel={n1} grid=(256,1,1) block=(512,1,1) lds=163840
; @launch kernel={n2} grid=(224,1,1) block=(512,1,1) lds=163840
.amdgcn_target "amdgcn-amd-amdhsa--gfx950"
.text
"""
    a = Asm()
    k1(a, n1)
    k2(a, n2)
    tail = '.section .rodata,"a"\n' + kernel_desc(n1, 256, 102, 256) + kernel_desc(n2, 256, 102, 256)
    open(out, "w").write(hdr + a.text() + tail)
main()
```
